```python
import torch

def _softmax(x, axis=-1):
    return torch.softmax(x, dim=axis)
def _gelu(x):
    return torch.nn.functional.gelu(x, approximate="tanh")
def _silu(x):
    return torch.nn.functional.silu(x)
def _sigmoid(x):
    return torch.sigmoid(x)
def _layernorm(x, axis=-1, eps=1e-5):
    m = x.mean(dim=axis, keepdim=True)
    v = x.var(dim=axis, keepdim=True, unbiased=False)
    return (x - m) / torch.sqrt(v + eps)
def _scatter_add(tgt, idx, src, axis=0):
    return tgt.clone().index_add_(axis, idx, src)
def _segment_sum(src, seg, n):
    out = torch.zeros((n,) + src.shape[1:], dtype=src.dtype)
    return out.index_add_(0, seg, src)
def _pad(x, pw):
    flat = tuple(v for pair in reversed(pw) for v in pair)
    return torch.nn.functional.pad(x, flat)

kernel_name = 'concat_heads__mha_block_cached__gqa_block_cached__near_ridge'

def setup_inputs():

    _w = (lambda a: (lambda t: t.to(torch.bfloat16) if t.is_floating_point() else t)(torch.as_tensor(a)))
    def _A_setup():
        B, Sq, D = 16, 144, 576
        H, Sk, Dh = 32, 512, 128
        return {
            "x": _w((lambda *s: torch.randn(*s, dtype=torch.bfloat16) * 0.8)(B, Sq, D)),
            "k_cache": _w((lambda *s: torch.randn(*s, dtype=torch.bfloat16) * 0.8)(B, H, Sk, Dh)),
            "v_cache": _w((lambda *s: torch.randn(*s, dtype=torch.bfloat16) * 0.05)(B, H, Sk, Dh)),
            "wq": _w((lambda *s: torch.randn(*s, dtype=torch.bfloat16) * 0.8)(D, H * Dh) * (D ** -0.5)),
            "wo": _w((lambda *s: torch.randn(*s, dtype=torch.bfloat16) * 0.05)(H * Dh, D) * ((H * Dh) ** -0.5)),
        }
    _A_in = _A_setup()

    def _B_setup():
        B, Sq, D = 16, 144, 576
        Hq, Hkv, Sk, Dh = 32, 32, 512, 128
        assert Hq % Hkv == 0, (Hq, Hkv)
        return {
            "x": _w((lambda *s: torch.randn(*s, dtype=torch.bfloat16) * 0.8)(B, Sq, D)),
            "k_cache": _w((lambda *s: torch.randn(*s, dtype=torch.bfloat16) * 0.8)(B, Hkv, Sk, Dh)),
            "v_cache": _w((lambda *s: torch.randn(*s, dtype=torch.bfloat16) * 0.05)(B, Hkv, Sk, Dh)),
            "wq": _w((lambda *s: torch.randn(*s, dtype=torch.bfloat16) * 0.8)(D, Hq * Dh) * (D ** -0.5)),
            "wo": _w((lambda *s: torch.randn(*s, dtype=torch.bfloat16) * 0.05)(Hq * Dh, D) * ((Hq * Dh) ** -0.5)),
        }
    _B_in = _B_setup()

    return {
        "A_x": _A_in["x"],
        "A_k_cache": _A_in["k_cache"],
        "A_v_cache": _A_in["v_cache"],
        "A_wq": _A_in["wq"],
        "A_wo": _A_in["wo"],
        "B_x": _B_in["x"],
        "B_k_cache": _B_in["k_cache"],
        "B_v_cache": _B_in["v_cache"],
        "B_wq": _B_in["wq"],
        "B_wo": _B_in["wo"],
    }

def reference(A_x, A_k_cache, A_v_cache, A_wq, A_wo, B_x, B_k_cache, B_v_cache, B_wq, B_wo):
    def _A_ref(x, k_cache, v_cache, wq, wo):
        B, Sq, D = x.shape
        H, Dh = 32, 128
        q = (lambda x, *d: x.permute(*d))((x @ wq).reshape(B, Sq, H, Dh), 0, 2, 1, 3)
        scores = torch.einsum("bhqd,bhkd->bhqk", q, k_cache) * (Dh ** -0.5)
        p = _softmax(scores, axis=-1)
        o = torch.einsum("bhqk,bhkd->bhqd", p, v_cache)
        return (lambda x, *d: x.permute(*d))(o, 0, 2, 1, 3).reshape(B, Sq, H * Dh) @ wo

    def _B_ref(x, k_cache, v_cache, wq, wo):
        B, Sq, D = x.shape
        Hq, Dh = 32, 128
        Hkv = k_cache.shape[1]
        rep = Hq // Hkv
        q = (lambda x, *d: x.permute(*d))((x @ wq).reshape(B, Sq, Hq, Dh), 0, 2, 1, 3)
        k = (lambda x, n, axis: torch.repeat_interleave(x, n, dim=axis))(k_cache, rep, axis=1)
        v = (lambda x, n, axis: torch.repeat_interleave(x, n, dim=axis))(v_cache, rep, axis=1)
        scores = torch.einsum("bhqd,bhkd->bhqk", q, k) * (Dh ** -0.5)
        p = _softmax(scores, axis=-1)
        o = torch.einsum("bhqk,bhkd->bhqd", p, v)
        return (lambda x, *d: x.permute(*d))(o, 0, 2, 1, 3).reshape(B, Sq, Hq * Dh) @ wo

    a = _A_ref(A_x, A_k_cache, A_v_cache, A_wq, A_wo)
    b = _B_ref(B_x, B_k_cache, B_v_cache, B_wq, B_wo)
    return torch.concatenate([a, b], axis=-1)
```

```python
import re


def vr(n, c=1):
    return f"v{n}" if c == 1 else f"v[{n}:{n + c - 1}]"


def sr(n, c=1):
    return f"s{n}" if c == 1 else f"s[{n}:{n + c - 1}]"


_REG = re.compile(r"^(-?)(abs\()?([vsa])(?:(\d+)|\[(\d+):(\d+)\])\)?$")


def regs_of(op):
    op = op.strip()
    if op in ("vcc", "exec", "m0", "scc"):
        return {op}
    if op in ("vcc_lo", "vcc_hi"):
        return {"vcc"}
    m = _REG.match(op)
    if not m:
        return set()
    k = m.group(3)
    if m.group(4) is not None:
        return {f"{k}{m.group(4)}"}
    return {f"{k}{i}" for i in range(int(m.group(5)), int(m.group(6)) + 1)}


TRANS = ("v_exp_f32", "v_rcp_f32", "v_log_f32", "v_rsq_f32", "v_sqrt_f32")


class Ins:
    __slots__ = ("text", "kind", "rd", "wr", "mC", "mAB", "mD", "tag", "data")

    def __init__(self, text, kind, rd=(), wr=(), tag=None):
        self.text = text
        self.kind = kind
        self.rd = set(rd)
        self.wr = set(wr)
        self.mC = self.mAB = self.mD = None
        self.tag = tag
        self.data = None

    def __repr__(self):
        return self.text


def mfma(D, A, B, C):
    cs = C if isinstance(C, str) else vr(C, 4)
    i = Ins(f"v_mfma_f32_16x16x32_bf16 {vr(D, 4)}, {vr(A, 4)}, {vr(B, 4)}, {cs}", "mfma")
    i.mD = regs_of(vr(D, 4))
    i.mAB = regs_of(vr(A, 4)) | regs_of(vr(B, 4))
    i.mC = regs_of(cs)
    i.rd = i.mAB | i.mC
    i.wr = set(i.mD)
    return i


def valu(op, dst, *srcs, extra_rd=(), extra_wr=()):
    kind = "trans" if op in TRANS else "valu"
    rd = set(extra_rd)
    for s in srcs:
        rd |= regs_of(str(s))
    wr = regs_of(dst) | set(extra_wr)
    if op.startswith("v_fmac") or op.startswith("v_permlane"):
        rd |= regs_of(dst)
    if op.startswith("v_permlane"):
        wr |= regs_of(str(srcs[0]))
        kind = "perm"
    if op.startswith("v_readfirstlane") or op.startswith("v_readlane"):
        kind = "rdlane"
    return Ins(f"{op} {dst}, " + ", ".join(str(s) for s in srcs), kind, rd, wr)


def salu(op, dst, *srcs):
    rd = set()
    for s in srcs:
        rd |= regs_of(str(s))
    wr = regs_of(dst)
    if op.startswith("s_cmp"):
        rd |= regs_of(dst)
        wr = {"scc"}
    elif op in ("s_mov_b32", "s_mov_b64", "s_mul_i32", "s_movk_i32", "s_cselect_b32", "s_cselect_b64", "s_mul_hi_u32"):
        pass
    else:
        wr = wr | {"scc"}
    if op.startswith("s_cselect") or op in ("s_addc_u32", "s_subb_u32"):
        rd.add("scc")
    return Ins(f"{op} {dst}, " + ", ".join(str(s) for s in srcs), "salu", rd, wr)


def ds_read(dst, n, addr, off=0, tr=False):
    op = {1: "ds_read_b32", 2: "ds_read_b64", 4: "ds_read_b128"}[n]
    if tr:
        assert n == 2
        op = "ds_read_b64_tr_b16"
    assert 0 <= off < 65536, off
    o = f" offset:{off}" if off else ""
    return Ins(f"{op} {vr(dst, n)}, {vr(addr)}{o}", "ds_read", regs_of(vr(addr)), regs_of(vr(dst, n)))


def ds_write(addr, src, n, off=0):
    op = {1: "ds_write_b32", 2: "ds_write_b64", 4: "ds_write_b128"}[n]
    assert 0 <= off < 65536, off
    o = f" offset:{off}" if off else ""
    return Ins(f"{op} {vr(addr)}, {vr(src, n)}{o}", "ds_write", regs_of(vr(addr)) | regs_of(vr(src, n)), ())


_SFX = {1: "dword", 2: "dwordx2", 3: "dwordx3", 4: "dwordx4"}


def buf_load(dst, n, voff, srd, soff, off=0, flags="", tag=None):
    assert 0 <= off < 4096
    o = f" offset:{off}" if off else ""
    f = f" {flags}" if flags else ""
    return Ins(f"buffer_load_{_SFX[n]} {vr(dst, n)}, {vr(voff)}, {sr(srd, 4)}, {soff} offen{o}{f}", "vload",
               regs_of(vr(voff)) | regs_of(sr(srd, 4)) | regs_of(str(soff)), regs_of(vr(dst, n)), tag=tag)


def buf_store(src, n, voff, srd, soff, off=0, flags="", tag=None, op=None):
    assert 0 <= off < 4096
    o = f" offset:{off}" if off else ""
    f = f" {flags}" if flags else ""
    opn = op or f"buffer_store_{_SFX[n]}"
    i = Ins(f"{opn} {vr(src, n)}, {vr(voff)}, {sr(srd, 4)}, {soff} offen{o}{f}", "vstore",
            regs_of(vr(voff)) | regs_of(sr(srd, 4)) | regs_of(str(soff)) | regs_of(vr(src, n)), (), tag=tag)
    i.data = regs_of(vr(src, n)) if n >= 3 else None
    return i


def dma(voff, srd, soff, off=0, flags="", tag=None):
    assert 0 <= off < 4096
    o = f" offset:{off}" if off else ""
    f = f" {flags}" if flags else ""
    return Ins(f"buffer_load_dwordx4 {vr(voff)}, {sr(srd, 4)}, {soff} offen{o}{f} lds", "dma",
               regs_of(vr(voff)) | regs_of(sr(srd, 4)) | regs_of(str(soff)) | {"m0"}, (), tag=tag)


def raw(text, kind="other", rd=(), wr=()):
    return Ins(text, kind, rd, wr)


def label(name):
    return Ins(f"{name}:", "label")


def nop(n):
    return Ins(f"s_nop {n}", "nop")


def barrier():
    return Ins("s_barrier", "barrier")


def wait_lgkm(n):
    i = Ins(f"s_waitcnt lgkmcnt({n})", "wait_lgkm")
    i.data = n
    return i


def wait_vm(n):
    assert 0 <= n <= 63, n
    i = Ins(f"s_waitcnt vmcnt({n})", "wait_vm")
    i.data = n
    return i


def wait_tag(tag):
    i = Ins(f"; wait_tag {tag}", "wait_tag", tag=tag)
    return i


def branch(op, target):
    rd = set()
    if "scc" in op:
        rd = {"scc"}
    if "vcc" in op:
        rd = {"vcc"}
    return Ins(f"{op} {target}", "branch", rd)


def comment(t):
    return Ins(f"; {t}", "comment")


def pass_lgkm(code, slack=28):
    out = []
    pend = []
    for ins in code:
        k = ins.kind
        if k == "wait_lgkm":
            n = ins.data
            if len(pend) > n:
                pend = pend[len(pend) - n:] if n else []
            out.append(ins)
            continue
        if k in ("label", "comment"):
            out.append(ins)
            continue
        touched = ins.rd | ins.wr
        need = -1
        for idx, (w, _) in enumerate(pend):
            if w & touched:
                need = idx
        if need >= 0:
            pos = len(out)
            while need + 1 < len(pend) and pos - pend[need + 1][1] >= slack:
                need += 1
            n = len(pend) - 1 - need
            assert n <= 15
            out.append(wait_lgkm(n))
            pend = pend[need + 1:]
        if k in ("ds_read", "ds_write"):
            if len(pend) >= 15:
                out.append(wait_lgkm(14))
                pend = pend[len(pend) - 14:]
            pend.append((set(ins.wr), len(out)))
        out.append(ins)
    return out


def pass_vm(code, init=None):
    out = []
    q = list(init or [])
    for ins in code:
        k = ins.kind
        if k == "wait_tag":
            last = -1
            for idx, (t, _) in enumerate(q):
                if t == ins.tag:
                    last = idx
            if last >= 0:
                n = len(q) - 1 - last
                out.append(wait_vm(min(n, 63)))
                q = q[last + 1:]
            continue
        if k == "vm_reset":
            q = []
            continue
        if k == "wait_vm":
            n = ins.data
            if len(q) > n:
                q = q[len(q) - n:] if n else []
            out.append(ins)
            continue
        if k in ("label", "comment"):
            out.append(ins)
            continue
        touched = ins.rd | ins.wr
        need = -1
        for idx, (_, w) in enumerate(q):
            if w & touched:
                need = idx
        if need >= 0:
            n = len(q) - 1 - need
            out.append(wait_vm(min(n, 63)))
            q = q[need + 1:]
        if k in ("vload", "vstore", "dma", "vatomic"):
            q.append((ins.tag, set(ins.wr) if k == "vload" else set()))
            assert len(q) <= 63, "too many outstanding vmem ops"
        out.append(ins)
    return out, q


VALUISH = ("valu", "trans", "perm", "rdlane")


def _states(ins):
    if ins.kind in ("label", "comment"):
        return 0
    if ins.kind == "nop":
        return int(ins.text.split()[1]) + 1
    return 1


def pass_hazard(code):
    out = []
    for ins in code:
        k = ins.kind
        if k in ("label", "comment", "nop"):
            out.append(ins)
            continue
        need = 0
        dist = 0
        for p in reversed(out):
            if dist >= 12:
                break
            pk = p.kind
            req = 0
            if pk in VALUISH:
                vw = {r for r in p.wr if r[0] in "va"}
                sw = {r for r in p.wr if r[0] == "s" or r in ("vcc",)}
                if k == "mfma" and vw & ins.rd:
                    req = max(req, 2)
                if pk == "trans" and k in ("valu", "perm", "rdlane") and vw & ins.rd:
                    req = max(req, 1)
                if k == "perm" and vw & ins.rd:
                    req = max(req, 2)
                if k == "rdlane" and vw & ins.rd:
                    req = max(req, 1)
                if sw and k in VALUISH and sw & ins.rd:
                    req = max(req, 2)
                if sw and k in ("vload", "vstore", "dma", "vatomic") and sw & ins.rd:
                    req = max(req, 5)
                if "exec" in p.wr:
                    req = max(req, 5)
            elif pk == "mfma":
                if k == "mfma":
                    if p.mD & ins.mAB:
                        req = max(req, 8)
                    if p.mD & ins.mC and p.mD != ins.mC:
                        req = max(req, 6)
                    if p.mD & ins.mD and p.mD != ins.mC:
                        req = max(req, 6)
                else:
                    if p.mD & (ins.rd | ins.wr):
                        req = max(req, 8)
                    if k in VALUISH and p.mC & ins.wr:
                        req = max(req, 3)
            elif pk == "salu":
                if "m0" in p.wr and k == "dma":
                    req = max(req, 1)
            elif pk == "vstore":
                if p.data and p.data & ins.wr:
                    req = max(req, 2)
            if req - dist > need:
                need = req - dist
            dist += _states(p)
        if need > 0:
            out.append(nop(need - 1))
        out.append(ins)
    return out


def render(code):
    lines = []
    for ins in code:
        if ins.kind == "label":
            lines.append(ins.text)
        else:
            lines.append("  " + ins.text)
    return "\n".join(lines) + "\n"


def interleave(mf, fillers):
    out = list(fillers.get(-1, []))
    for i, m in enumerate(mf):
        out.append(m)
        out.extend(fillers.get(i, []))
    return out


def spread(fillers, items, lo, hi):
    n = len(items)
    w = hi - lo
    for k, it in enumerate(items):
        g = lo + (k * w) // n
        fillers.setdefault(g, []).append(it)
```

```python
from asmlib import *
import gen as G
from gen import s, v, S_T0, S_WS, S_WO, S_OUT, S_WAVE, S_PAIR, S_J, S_B, HEAD_BYTES, WS_O, WS_P

def launches():
    return [("oproj_kernel", 256, 512, 8 * 2 * 9216), ("reduce_kernel", 2592, 256, 0)]

WOA, L16, VO, TMP = 2, 3, 4, 14
OF, WF, ACC = 16, 60, 72

def calc_wo_voffs(dst, t0, t1):
    c = []
    for nn in range(9):
        c += [valu("v_add_u32", v(t0), 64 * nn, v(0)),
              valu("v_mul_u32_u24", v(t1), 3641, v(t0)),
              valu("v_lshrrev_b32", v(t1), 16, v(t1)),
              valu("v_mul_u32_u24", v(dst + nn), 18, v(t1)),
              valu("v_sub_u32", v(t0), v(t0), v(dst + nn)),
              valu("v_lshlrev_b32", v(t0), 4, v(t0)),
              valu("v_mul_u32_u24", v(t1), 1152, v(t1)),
              valu("v_add_u32", v(t0), v(t0), v(t1)),
              valu("v_subrev_u32", v(dst + nn), (nn & 3) * 1024, v(t0))]
    return c

def oproj():
    S_N, S_KE, S_RH, S_WOFF, S_OOFF, S_LDS, S_K, S_POFF = 40, 41, 42, 43, 44, 45, 46, 47
    c = G.common_prologue("L_end2", 256)
    c += [salu("s_lshr_b32", s(S_N), s(S_J), 1), salu("s_and_b32", s(S_T0), s(S_J), 1), salu("s_lshl_b32", s(S_T0), s(S_T0), 2),
          salu("s_lshr_b32", s(S_KE), s(S_WAVE), 1), salu("s_add_u32", s(S_KE), s(S_KE), s(S_T0)),
          salu("s_and_b32", s(S_RH), s(S_WAVE), 1),
          salu("s_mul_i32", s(S_LDS), s(S_WAVE), 18432)]
    c += [salu("s_mul_i32", s(S_WOFF), s(S_KE), 512 * 1152), salu("s_mul_i32", s(S_T0), s(S_N), 288),
          salu("s_add_u32", s(S_WOFF), s(S_WOFF), s(S_T0))]
    c += [salu("s_lshl_b32", s(S_T0), s(S_PAIR), 5), salu("s_lshl_b32", s(S_T0 + 1), s(S_KE), 2),
          salu("s_add_u32", s(S_T0), s(S_T0), s(S_T0 + 1)), salu("s_mul_i32", s(S_OOFF), s(S_T0), HEAD_BYTES),
          salu("s_mul_i32", s(S_T0), s(S_RH), 5 * 4096), salu("s_add_u32", s(S_OOFF), s(S_OOFF), s(S_T0))]
    c += [salu("s_lshl_b32", s(S_T0), s(S_PAIR), 2), salu("s_add_u32", s(S_T0), s(S_T0), s(S_N)),
          salu("s_lshl_b32", s(S_T0), s(S_T0), 3), salu("s_add_u32", s(S_T0), s(S_T0), s(S_KE)),
          salu("s_mul_i32", s(S_T0), s(S_T0), 81), salu("s_mul_i32", s(S_T0 + 1), s(S_RH), 45),
          salu("s_add_u32", s(S_T0), s(S_T0), s(S_T0 + 1)), salu("s_lshl_b32", s(S_T0), s(S_T0), 10),
          salu("s_add_u32", s(S_POFF), s(S_T0), hex(WS_P))]
    c += calc_wo_voffs(VO, TMP, TMP + 1)
    c += [valu("v_lshrrev_b32", v(TMP), 2, v(0)), valu("v_mul_u32_u24", v(TMP), 288, v(TMP)),
          valu("v_and_b32", v(TMP + 1), 3, v(0)), valu("v_lshl_add_u32", v(TMP), v(TMP + 1), 3, v(TMP)),
          valu("v_add_u32", v(WOA), s(S_LDS), v(TMP)), valu("v_lshlrev_b32", v(L16), 4, v(0))]
    c += [salu("s_cmp_eq_u32", s(S_RH), 0), branch("s_cbranch_scc0", "L_op4")]
    for nr in (5, 4):
        if nr == 4:
            c += [label("L_op4")]
        def loads(k):
            sl = k & 1
            p = []
            for grp in range(3):
                p += [salu("s_add_u32", "m0", s(S_LDS), hex(sl * 9216 + grp * 4096)),
                      salu("s_add_u32", s(S_T0), s(S_WOFF), hex(k * 32 * 1152))]
                for nn in range(4 * grp, min(4 * grp + 4, 9)):
                    p.append(dma(VO + nn, S_WO, s(S_T0), (nn & 3) * 1024, tag=f"k{k}"))
            for tq in range(nr):
                p += [salu("s_add_u32", s(S_T0), s(S_OOFF), hex((k >> 2) * HEAD_BYTES + tq * 4096)),
                      buf_load(OF + (sl * 5 + tq) * 4, 4, L16, S_WS, s(S_T0), (k & 3) * 1024, tag=f"k{k}")]
            return p
        c += loads(0)
        for k in range(16):
            sl = k & 1
            c += [wait_lgkm(0)]
            if k + 1 < 16:
                c += loads(k + 1)
            c += [wait_tag(f"k{k}")]
            for Tn in range(9):
                wf = WF + (Tn % 3) * 4
                c += [ds_read(wf + 2 * u, 2, WOA, sl * 9216 + u * 4608 + Tn * 32, tr=True) for u in range(2)]
                for tq in range(nr):
                    D = ACC + (tq * 9 + Tn) * 4
                    c.append(mfma(D, wf, OF + (sl * 5 + tq) * 4, "0" if k == 0 else D))
        for tq in range(nr):
            for Tn in range(9):
                idx = tq * 9 + Tn
                if idx % 4 == 0:
                    c += [salu("s_add_u32", s(S_T0), s(S_POFF), hex(idx * 1024))]
                c += [buf_store(ACC + idx * 4, 4, L16, S_WS, s(S_T0), (idx % 4) * 1024)]
                if idx % 16 == 15:
                    c += [wait_vm(0)]
        c += [wait_vm(0), raw("s_endpgm", "branch")]
    c += [label("L_end2"), raw("s_endpgm", "branch")]
    c, _ = pass_vm(c)
    return pass_hazard(pass_lgkm(c))

def reduce_k():
    c = [salu("s_cmp_ge_u32", s(2), 2592), branch("s_cbranch_scc1", "L_end3")]
    c += [raw("s_load_dwordx2 s[4:5], s[0:1], 80", "smem"), raw("s_load_dwordx2 s[6:7], s[0:1], 96", "smem")]
    c += [valu("v_lshrrev_b32", v(1), 6, v(0)), valu("v_readfirstlane_b32", s(3), v(1)), valu("v_and_b32", v(0), 63, v(0))]
    c += [raw("s_waitcnt lgkmcnt(0)")]
    c += G.srd(8, 4, 5, G.OUT_BYTES) + G.srd(12, 6, 7, G.WS_BYTES)
    c += [salu("s_lshl_b32", s(16), s(2), 2), salu("s_add_u32", s(16), s(16), s(3)),
          salu("s_mul_i32", s(17), s(16), 51782), salu("s_lshr_b32", s(17), s(17), 22),
          salu("s_mul_i32", s(18), s(17), 81), salu("s_sub_u32", s(18), s(16), s(18)),
          salu("s_mul_i32", s(19), s(18), 57), salu("s_lshr_b32", s(19), s(19), 9),
          salu("s_mul_i32", s(20), s(19), 9), salu("s_sub_u32", s(20), s(18), s(20)),
          salu("s_lshr_b32", s(21), s(17), 2), salu("s_and_b32", s(22), s(17), 3),
          salu("s_mul_i32", s(23), s(17), 8 * 81), salu("s_add_u32", s(23), s(23), s(18)),
          salu("s_lshl_b32", s(23), s(23), 10), salu("s_add_u32", s(23), s(23), hex(WS_P))]
    c += [valu("v_lshlrev_b32", v(2), 4, v(0))]
    for ke in range(8):
        c += [salu("s_add_u32", s(24), s(23), hex(ke * 81 * 1024)), buf_load(8 + 4 * ke, 4, 2, 12, s(24))]
    for ke in range(1, 8):
        c += [valu("v_add_f32", v(8 + r), v(8 + r), v(8 + 4 * ke + r)) for r in range(4)]
    c += [valu("v_cvt_pk_bf16_f32", v(4), v(8), v(9)), valu("v_cvt_pk_bf16_f32", v(5), v(10), v(11))]
    c += [salu("s_and_b32", s(24), s(21), 15), salu("s_mul_i32", s(24), s(24), 144), salu("s_lshl_b32", s(25), s(19), 4),
          salu("s_add_u32", s(24), s(24), s(25)), salu("s_mul_i32", s(24), s(24), 2304),
          salu("s_lshr_b32", s(25), s(21), 4), salu("s_mul_i32", s(25), s(25), 1152), salu("s_add_u32", s(24), s(24), s(25)),
          salu("s_mul_i32", s(25), s(22), 288), salu("s_add_u32", s(24), s(24), s(25)),
          salu("s_lshl_b32", s(25), s(20), 5), salu("s_add_u32", s(24), s(24), s(25))]
    c += [valu("v_and_b32", v(2), 15, v(0)), valu("v_mul_u32_u24", v(2), 2304, v(2)),
          valu("v_lshrrev_b32", v(3), 4, v(0)), valu("v_lshl_add_u32", v(2), v(3), 3, v(2))]
    c += [buf_store(4, 2, 2, 8, s(24))]
    c += [label("L_end3"), raw("s_endpgm", "branch")]
    c, _ = pass_vm(c)
    return pass_hazard(c)

assert all((u * 51782) >> 22 == u // 81 for u in range(10368))
assert all((u * 57) >> 9 == u // 9 for u in range(81))

def text():
    return G.kernel_text("oproj_kernel", oproj(), 256) + G.kernel_text("reduce_kernel", reduce_k(), 48)
```

```python
import math
import struct
import sys
from asmlib import *

NAME = "concat_heads__mha_block_cached__gqa_block_cached__near_ridge"

X_BYTES = 16 * 144 * 576 * 2
KV_BYTES = 16 * 32 * 512 * 128 * 2
WQ_BYTES = 576 * 4096 * 2
WO_BYTES = 4096 * 576 * 2
OUT_BYTES = 16 * 144 * 1152 * 2
WS_BYTES = 292618240
HEAD_BYTES = 36864
WS_O = 0
WS_Q = 40 << 20
WS_P = 80 << 20

WSLOT = 17408
LDS_K = 3 * WSLOT
LDS_V = LDS_K + 32768
LDS_WO = LDS_V + 32768
LDS_TOTAL = 163840

SCALE = math.log2(math.e) / math.sqrt(128.0)
SCALE_BITS = struct.unpack("<I", struct.pack("<f", SCALE))[0]
THRESH_BITS = struct.unpack("<I", struct.pack("<f", 16.0))[0]

S_KV = 4
S_V = 8
S_WQ = 12
S_X = 16
S_WS = 20
S_WO = 24
S_OUT = 28
S_WAVE = 32
S_PAIR = 33
S_J = 34
S_B = 35
S_R = 36
S_U = 37
S_T0 = 38
S_KVCUR = 46
S_KVNXT = 47
S_HQ = 48
S_HQN = 49
S_XB = 50
S_QST = 51
S_OST = 54
S_LNK = 58
S_SCALE = 60
S_CNT = 61
S_LDSKV = 62
S_DBG = 64
S_ARG = 68


def s(n, c=1):
    return sr(n, c)


def v(n, c=1):
    return vr(n, c)


def srd(dst, lo, hi, nbytes):
    return [salu("s_mov_b32", s(dst), s(lo)), salu("s_mov_b32", s(dst + 1), s(hi)),
            salu("s_mov_b32", s(dst + 2), hex(nbytes)), salu("s_mov_b32", s(dst + 3), "0x20000")]


def common_prologue(end_label, nwg):
    c = []
    c += [salu("s_cmp_ge_u32", s(2), nwg), branch("s_cbranch_scc1", end_label)]
    A = S_ARG
    c += [raw(f"s_load_dwordx16 {s(A, 16)}, s[0:1], 0", "smem"),
          raw(f"s_load_dwordx8 {s(A + 16, 8)}, s[0:1], 64", "smem"),
          raw(f"s_load_dwordx2 {s(A + 24, 2)}, s[0:1], 96", "smem")]
    c += [valu("v_lshrrev_b32", v(1), 6, v(0)),
          valu("v_readfirstlane_b32", s(S_WAVE), v(1)),
          valu("v_and_b32", v(0), 63, v(0))]
    c += [salu("s_and_b32", s(S_T0), s(2), 7), salu("s_lshl_b32", s(S_T0), s(S_T0), 2),
          salu("s_lshr_b32", s(S_T0 + 1), s(2), 6), salu("s_add_u32", s(S_PAIR), s(S_T0), s(S_T0 + 1)),
          salu("s_lshr_b32", s(S_T0 + 1), s(2), 3), salu("s_and_b32", s(S_J), s(S_T0 + 1), 7),
          salu("s_and_b32", s(S_B), s(S_PAIR), 15)]
    c += [raw("s_waitcnt lgkmcnt(0)", "other")]
    c += [salu("s_cmp_lt_u32", s(S_PAIR), 16)]
    for k in range(5):
        c += [salu("s_cselect_b32", s(A + 2 * k), s(A + 2 * k), s(A + 10 + 2 * k)),
              salu("s_cselect_b32", s(A + 2 * k + 1), s(A + 2 * k + 1), s(A + 11 + 2 * k))]
    c += srd(S_X, A + 0, A + 1, X_BYTES)
    c += srd(S_KV, A + 2, A + 3, KV_BYTES)
    c += srd(S_V, A + 4, A + 5, KV_BYTES)
    c += srd(S_WQ, A + 6, A + 7, WQ_BYTES)
    c += srd(S_WO, A + 8, A + 9, WO_BYTES)
    c += srd(S_OUT, A + 20, A + 21, OUT_BYTES)
    c += srd(S_DBG, A + 22, A + 23, 256)
    c += srd(S_WS, A + 24, A + 25, WS_BYTES)
    return c


def calc_trA(dst, base, t0, t1, t2):
    c = []
    c += [valu("v_lshrrev_b32", v(t0), 4, v(0)),
          valu("v_bfe_u32", v(t1), v(0), 2, 2),
          valu("v_lshl_add_u32", v(t2), v(t0), 3, v(t1)),
          valu("v_lshlrev_b32", v(t2), 8, v(t2)),
          valu("v_and_b32", v(t0), 1, v(t0)),
          valu("v_lshl_add_u32", v(t1), v(t0), 2, v(t1)),
          valu("v_and_b32", v(t0), 3, v(0)),
          valu("v_lshl_add_u32", v(t2), v(t0), 3, v(t2)),
          valu("v_add_u32", v(t2), base, v(t2))]
    for T in range(8):
        c += [valu("v_xor_b32", v(t0), T, v(t1)),
              valu("v_lshl_add_u32", v(dst + T), v(t0), 5, v(t2))]
    return c


def calc_kA(dst, base, t0, t1, t2):
    c = []
    c += [valu("v_bfe_u32", v(t0), v(0), 2, 2),
          valu("v_and_b32", v(t1), 3, v(0)),
          valu("v_lshl_add_u32", v(t2), v(t0), 3, v(t1)),
          valu("v_lshlrev_b32", v(t2), 8, v(t2)),
          valu("v_add_u32", v(t2), base, v(t2)),
          valu("v_and_b32", v(t0), 7, v(0)),
          valu("v_lshlrev_b32", v(t0), 1, v(t0)),
          valu("v_lshrrev_b32", v(t1), 4, v(0)),
          valu("v_xor_b32", v(t0), v(t0), v(t1))]
    for m in range(4):
        c += [valu("v_xor_b32", v(t1), 4 * m, v(t0)),
              valu("v_lshl_add_u32", v(dst + m), v(t1), 4, v(t2))]
    return c


def calc_tile_voff(dst, hi, rowstride, add, t0, t1):
    c = []
    c += [valu("v_lshrrev_b32", v(t0), 4, v(0)),
          valu("v_or_b32", v(t1), hi << 2, v(t0)),
          valu("v_lshlrev_b32", v(t1), 1, v(t1)),
          valu("v_xor_b32", v(t1), v(t1), v(0)),
          valu("v_and_b32", v(t1), 15, v(t1)),
          valu("v_lshlrev_b32", v(t1), 4, v(t1)),
          valu("v_mul_u32_u24", v(t0), rowstride, v(t0)),
          valu("v_add_u32", v(t0), v(t0), v(t1)),
          valu("v_add_u32", v(dst), add, v(t0))]
    return c


def calc_w_voffs(dst, t0, t1):
    c = []
    for n in range(4):
        c += calc_tile_voff(dst + n, (n >> 1) & 1, 8192, n * (32768 - 1024), t0, t1)
    c += [valu("v_lshrrev_b32", v(t0), 4, v(0)),
          valu("v_sub_u32", v(t0), 0, v(t0)),
          valu("v_xor_b32", v(t0), v(t0), v(0)),
          valu("v_and_b32", v(t0), 3, v(t0)),
          valu("v_lshlrev_b32", v(t0), 4, v(t0)),
          valu("v_lshrrev_b32", v(t1), 2, v(0)),
          valu("v_mul_u32_u24", v(t1), 1152, v(t1)),
          valu("v_add_u32", v(t0), v(t0), v(t1))]
    for n in range(4):
        c += [valu("v_add_u32", v(dst + 4 + n), n * (18432 - 1024), v(t0))]
    return c


def w_dma_groups(vo, lds, s_hq, ks_wq, s_xb, ks_x, tag, dyn_lds=None):
    groups = []
    tmp = S_T0

    def m0(val):
        if dyn_lds is None:
            return [salu("s_mov_b32", "m0", hex(val))]
        return [salu("s_add_u32", "m0", s(dyn_lds), hex(val))]

    for grp in range(2):
        g = m0(lds + grp * 4096) + [salu("s_add_u32", s(tmp), s(s_hq), hex(ks_wq + grp * 131072))]
        for n in range(4):
            g.append(dma(vo + n, S_WQ, s(tmp), n * 1024, tag=tag))
        groups.append(g)
    for grp in range(3):
        g = m0(lds + 8192 + grp * 4096) + [salu("s_add_u32", s(tmp), s(s_xb), hex(ks_x + grp * 73728))]
        for n in range(4 if grp < 2 else 1):
            g.append(dma(vo + 4 + n, S_X, s(tmp), n * 1024, tag=tag))
        groups.append(g)
    return groups


def flat(groups):
    return [i for g in groups for i in g]


def initial_w_load(vo, t0, t1):
    c = calc_w_voffs(vo, t0, t1)
    c += [salu("s_lshl_b32", s(S_HQ), s(S_J), 8),
          salu("s_mul_i32", s(S_XB), s(S_B), 165888),
          salu("s_lshl_b32", s(S_T0 + 2), s(S_WAVE), 18),
          salu("s_add_u32", s(S_T0 + 2), s(S_T0 + 2), s(S_HQ)),
          salu("s_lshl_b32", s(S_T0 + 3), s(S_WAVE), 6),
          salu("s_add_u32", s(S_T0 + 3), s(S_T0 + 3), s(S_XB)),
          salu("s_mul_i32", s(S_T0 + 4), s(S_WAVE), WSLOT)]
    c += flat(w_dma_groups(vo, 0, S_T0 + 2, 0, S_T0 + 3, 0, "init", dyn_lds=S_T0 + 4))
    return c


class A:
    TRA = 2
    KA = 10
    L16 = 14
    L = 15
    TMP = 18
    NM = 24
    P = 36
    S = 48
    F = 72
    Q = 104
    O = 152
    TMP2 = 248

    @staticmethod
    def Sreg(a, t): return A.S + (a * 3 + t) * 4
    @staticmethod
    def Qreg(t, m): return A.Q + (t * 4 + m) * 4
    @staticmethod
    def Oreg(T, t): return A.O + (t * 8 + T) * 4


def a_kreads(slot):
    return [ds_read(A.F + 4 * p, 4, A.KA + (p >> 1), slot * 8192 + (p & 1) * 1024) for p in range(8)]


def a_adds(t):
    return [valu("v_add_f32", v(A.L + t), v(A.L + t), v(A.Sreg(a, t) + r)) for a in range(2) for r in range(4)]


def xlane_reduce(op, x, tmp):
    return [valu("v_mov_b32", v(tmp), v(x)),
            valu("v_permlane32_swap_b32", v(x), v(tmp)),
            valu(op, v(x), v(x), v(tmp)),
            valu("v_mov_b32", v(tmp), v(x)),
            valu("v_permlane16_swap_b32", v(x), v(tmp)),
            valu(op, v(x), v(x), v(tmp))]


def a_tile(slot, first, uid, stubs):
    mf = []
    for t in range(3):
        for p in range(8):
            a, m = p & 1, p >> 1
            D = A.Sreg(a, t)
            C = D if m else ("0" if first else A.NM + 4 * t)
            mf.append(mfma(D, A.F + 4 * p, A.Qreg(t, m), C))
    for t in range(3):
        for T in range(8):
            D = A.Oreg(T, t)
            mf.append(mfma(D, A.F + 4 * T, A.P + 4 * t, "0" if first else D))
    fl = {}
    if not first:
        spread(fl, a_adds(2), 0, 8)
    for t in range(3):
        base = 8 * t + 9
        s0, s1 = A.Sreg(0, t), A.Sreg(1, t)
        mx = A.TMP + t
        mxs = [valu("v_max3_f32", v(mx), v(s0), v(s0 + 1), v(s0 + 2)),
               valu("v_max3_f32", v(mx), v(mx), v(s0 + 3), v(s1)),
               valu("v_max3_f32", v(mx), v(mx), v(s1 + 1), v(s1 + 2)),
               valu("v_max_f32", v(mx), v(mx), v(s1 + 3))]
        exps = [valu("v_exp_f32", v(x + r), v(x + r)) for x in (s0, s1) for r in range(4)]
        cvts = [valu("v_cvt_pk_bf16_f32", v(A.P + 4 * t + k), v((s0, s1)[k >> 1] + 2 * (k & 1)),
                     v((s0, s1)[k >> 1] + 2 * (k & 1) + 1)) for k in range(4)]
        if first:
            pre = mxs + xlane_reduce("v_max_f32", mx, A.TMP + 3)
            pre += [valu("v_sub_f32", v(A.NM + 4 * t + k), 0, v(mx)) for k in range(4)]
            pre += [valu("v_sub_f32", v(x + r), v(x + r), v(mx)) for x in (s0, s1) for r in range(4)]
            spread(fl, pre, base, base + 5)
            spread(fl, exps, base + 5, base + 11)
            for k in range(4):
                fl.setdefault(base + 8 + k + (1 if k == 3 else 0), []).append(cvts[k])
        else:
            spread(fl, mxs, base, base + 2)
            ret = f"L_ret_{uid}_{t}"
            stub = f"L_stub_{uid}_{t}"
            fl.setdefault(base + 2, []).extend([
                valu("v_cmp_lt_f32", "vcc", hex(THRESH_BITS), v(mx)),
                branch("s_cbranch_vccnz", stub), label(ret)])
            stubs.extend([label(stub), raw(f"s_call_b64 {s(S_LNK, 2)}, L_rare_{t}", "branch"),
                          branch("s_branch", ret)])
            spread(fl, exps, base + 2, base + 10)
            for k in range(4):
                fl.setdefault(base + 5 + 2 * k, []).append(cvts[k])
    for p in range(8):
        fl.setdefault(16 + p, [])
        fl[16 + p] = [ds_read(A.F + 4 * p + 2 * u, 2, A.TRA + p, slot * 8192 + u * 1024, tr=True) for u in range(2)] + fl[16 + p]
    spread(fl, a_adds(0), 30, 40)
    spread(fl, a_adds(1), 40, 48)
    fl.setdefault(37, []).extend([wait_lgkm(0), barrier()])
    kr = a_kreads((slot + 1) & 3)
    for p in range(8):
        fl.setdefault(40 + p, [])
        fl[40 + p] = [kr[p]] + fl[40 + p]
    return interleave(mf, fl)


def a_rare(t):
    mx = A.TMP + t
    tmp = A.TMP + 3
    f = A.TMP + 4
    c = [label(f"L_rare_{t}"), nop(15)]
    c += xlane_reduce("v_max_f32", mx, tmp)
    c += [valu("v_max_f32", v(mx), 0, v(mx)),
          valu("v_sub_f32", v(f), 0, v(mx)),
          valu("v_exp_f32", v(f), v(f))]
    c += [valu("v_sub_f32", v(A.NM + 4 * t + k), v(A.NM + 4 * t + k), v(mx)) for k in range(4)]
    c += [valu("v_sub_f32", v(A.Sreg(a, t) + r), v(A.Sreg(a, t) + r), v(mx)) for a in range(2) for r in range(4)]
    c += [valu("v_mul_f32", v(A.L + t), v(A.L + t), v(f))]
    c += [valu("v_mul_f32", v(A.Oreg(T, t) + r), v(A.Oreg(T, t) + r), v(f)) for T in range(8) for r in range(4)]
    c += [nop(3), raw(f"s_setpc_b64 {s(S_LNK, 2)}", "branch")]
    return c


def a_epilogue_t(t, flags):
    c = []
    l = A.L + t
    c += xlane_reduce("v_add_f32", l, A.TMP + 3)
    c += [valu("v_rcp_f32", v(A.TMP + 4), v(l))]
    for m in range(4):
        tq = A.S + ((t * 4 + m) % 6) * 4
        for h in range(2):
            o = A.Oreg(2 * m + h, t)
            c += [valu("v_mul_f32", v(o + r), v(o + r), v(A.TMP + 4)) for r in range(4)]
            c += [valu("v_cvt_pk_bf16_f32", v(tq + 2 * h + w), v(o + 2 * w), v(o + 2 * w + 1)) for w in range(2)]
        c += [buf_store(tq, 4, A.L16, S_WS, s(S_OST + t), m * 1024, flags=flags, tag="ost")]
    c += [valu("v_mov_b32", v(l), 0)]
    return c


def a_qloads():
    return [buf_load(A.Qreg(t, m), 4, A.L16, S_WS, s(S_QST + t), m * 1024, flags="sc1", tag="q")
            for t in range(3) for m in range(4)]


def set_q_off(rreg_expr_add):
    c = [salu("s_add_u32", s(S_T0), s(S_R), rreg_expr_add), salu("s_and_b32", s(S_T0), s(S_T0), 3),
         salu("s_lshl_b32", s(S_T0 + 1), s(2), 2), salu("s_add_u32", s(S_T0), s(S_T0), s(S_T0 + 1)),
         salu("s_mul_i32", s(S_T0), s(S_T0), HEAD_BYTES),
         salu("s_mul_i32", s(S_T0 + 1), s(S_U), 12288), salu("s_add_u32", s(S_T0), s(S_T0), s(S_T0 + 1))]
    for t in range(3):
        c += [salu("s_add_u32", s(S_QST + t), s(S_T0), hex(WS_Q + t * 4096))]
    return c


def prog_A(o_flags=""):
    c = [label("L_A"), raw("s_setprio 2")]
    c += [salu("s_mov_b32", s(S_U), s(S_WAVE)), salu("s_mov_b32", s(S_R), 0)]
    c += calc_trA(A.TRA, LDS_V, A.TMP, A.TMP + 1, A.TMP + 2)
    c += calc_kA(A.KA, LDS_K, A.TMP, A.TMP + 1, A.TMP + 2)
    c += [valu("v_lshlrev_b32", v(A.L16), 4, v(0))]
    c += [valu("v_mov_b32", v(A.L + t), 0) for t in range(3)]
    c += set_q_off(0)
    c += [salu("s_lshl_b32", s(S_T0), s(S_PAIR), 5), salu("s_add_u32", s(S_T0), s(S_T0), s(S_J)),
          salu("s_mul_i32", s(S_T0), s(S_T0), HEAD_BYTES),
          salu("s_mul_i32", s(S_T0 + 1), s(S_U), 12288), salu("s_add_u32", s(S_T0), s(S_T0), s(S_T0 + 1))]
    for t in range(3):
        c += [salu("s_add_u32", s(S_OST + t), s(S_T0), hex(WS_O + t * 4096))]
    c += [wait_vm(0)]
    c += [barrier() for _ in range(18 + 3 + 1)]
    c += a_qloads()
    c += a_kreads(0)
    c += [branch("s_branch", "L_A_b0"), Ins("; vm_reset", "vm_reset")]
    stubs = []
    c += [label("L_A_T0")] + a_tile(0, False, "t0", stubs)
    c += [label("L_A_T1")] + a_tile(1, False, "t1", stubs)
    c += a_tile(2, False, "t2", stubs)
    c += a_tile(3, False, "t3", stubs)
    c += [salu("s_sub_u32", s(S_CNT), s(S_CNT), 1), salu("s_cmp_lg_u32", s(S_CNT), 0),
          branch("s_cbranch_scc1", "L_A_T0")]
    c += a_adds(2)
    c += a_epilogue_t(0, o_flags)
    c += a_epilogue_t(1, o_flags)
    c += set_q_off(1)
    c += [barrier()]
    c += a_qloads()
    c += a_epilogue_t(2, o_flags)
    c += [salu("s_add_u32", s(S_R), s(S_R), 1), salu("s_cmp_eq_u32", s(S_R), 4), branch("s_cbranch_scc1", "L_A_end")]
    for t in range(3):
        c += [salu("s_add_u32", s(S_OST + t), s(S_OST + t), hex(8 * HEAD_BYTES))]
    c += [label("L_A_b0")]
    c += [barrier()]
    c += [salu("s_mov_b32", s(S_CNT), 4)]
    c += [wait_vm(0)]
    c += a_tile(0, True, "t0s", stubs)
    c += [branch("s_branch", "L_A_T1")]
    c += [label("L_A_end"), wait_vm(0), raw("s_endpgm", "branch")]
    c += stubs
    for t in range(3):
        c += a_rare(t)
    return c


class B:
    TRA = 2
    XA = 10
    L16 = 11
    VO = 12
    TMP = 20
    QA = 32
    WF = 128
    XF = 160
    FT = 176

    @staticmethod
    def QAreg(T, t): return B.QA + (T * 3 + t) * 4


class Rebase:
    def __init__(self): self.base = 0

    def reach(self, addr):
        c = []
        if not (0 <= addr - self.base <= 65535 - WSLOT):
            d = addr - self.base
            for r in list(range(B.TRA, B.TRA + 8)) + [B.XA]:
                if d > 0:
                    c.append(valu("v_add_u32", v(r), hex(d), v(r)))
                else:
                    c.append(valu("v_subrev_u32", v(r), hex(-d), v(r)))
            self.base = addr
        return c, addr - self.base


def b_reads(off):
    rd = [ds_read(B.XF + 4 * t, 4, B.XA, off + 8192 + t * 1024) for t in range(3)]
    wr = [[ds_read(B.WF + 4 * T + 2 * u, 2, B.TRA + T, off + u * 1024, tr=True) for u in range(2)] for T in range(8)]
    return rd, wr


def b_finalize_pair(m, t, k):
    tq = B.FT + (k % 4) * 4
    c = []
    for h in range(2):
        q = B.QAreg(2 * m + h, t)
        c += [valu("v_mul_f32", v(q + r), s(S_SCALE), v(q + r)) for r in range(4)]
        c += [valu("v_cvt_pk_bf16_f32", v(tq + 2 * h + w), v(q + 2 * w), v(q + 2 * w + 1)) for w in range(2)]
    for w in range(2):
        c += [valu("v_permlane32_swap_b32", v(tq + w), v(tq + 2 + w))]
    for w in range(2):
        c += [valu("v_permlane16_swap_b32", v(tq + w), v(tq + 2 + w))]
    c += [buf_store(tq, 4, B.L16, S_WS, s(S_QST + t), m * 1024, tag="qst")]
    return c


def b_kstep(off, first, extra_groups, finalize=False, do_qp=True):
    c = []
    eg = list(extra_groups)
    if not do_qp:
        c += flat(eg)
        if finalize:
            k = 0
            for m in range(4):
                for t in range(3):
                    c += b_finalize_pair(m, t, k)
                    k += 1
        return c
    rd, wr = b_reads(off)
    c += rd + wr[0] + wr[1] + wr[2] + wr[3]
    if eg:
        c += eg.pop(0)
    k = 0
    for T in range(8):
        if finalize and T % 2 == 0:
            for t in range(3):
                c += b_finalize_pair(T // 2, t, k)
                k += 1
        for t in range(3):
            D = B.QAreg(T, t)
            c.append(mfma(D, B.WF + 4 * T, B.XF + 4 * t, "0" if first else D))
        if T + 4 < 8:
            c += wr[T + 4]
        if eg:
            c += eg.pop(0)
    c += flat(eg)
    return c


def kv_dma_groups(tile, s_base, tag):
    groups = []
    for grp in range(2):
        g = [salu("s_add_u32", "m0", s(S_LDSKV), hex((tile & 3) * 8192 + grp * 4096)),
             salu("s_add_u32", s(S_T0), s(s_base), hex(tile * 8192 + grp * 4096))]
        for n in range(4):
            g.append(dma(B.VO + (n >> 1), S_KV, s(S_T0), n * 1024, flags="nt", tag=tag))
        groups.append(g)
    return groups


PRO_SLOT = {ks: ks for ks in range(9)}
PRO_SLOT.update({9: 0, 10: 1, 11: 2, 12: 7, 13: 8, 14: 0, 15: 1, 16: 2, 17: 7})
PRO_ISSUE = {1: 9, 2: 10, 3: 11, 8: 12, 9: 13, 10: 14, 11: 15, 12: 16, 13: 17}


def prog_B(role):
    nm = f"L_B{role}"
    c = [label(nm)]
    c += [salu("s_sub_u32", s(S_U), s(S_WAVE), 4), salu("s_mov_b32", s(S_R), 0),
          salu("s_mov_b32", s(S_SCALE), hex(SCALE_BITS))]
    c += calc_trA(B.TRA, 0, B.TMP, B.TMP + 1, B.TMP + 2)
    c += [valu("v_bfe_u32", v(B.TMP), v(0), 2, 2), valu("v_sub_u32", v(B.TMP), 0, v(B.TMP)),
          valu("v_lshrrev_b32", v(B.TMP + 1), 4, v(0)), valu("v_xor_b32", v(B.TMP), v(B.TMP), v(B.TMP + 1)),
          valu("v_and_b32", v(B.TMP), 3, v(B.TMP)), valu("v_lshlrev_b32", v(B.TMP), 4, v(B.TMP)),
          valu("v_and_b32", v(B.TMP + 1), 15, v(0)), valu("v_lshl_add_u32", v(B.TMP), v(B.TMP + 1), 6, v(B.TMP)),
          salu("s_mul_i32", s(S_T0), s(S_U), 3072), valu("v_add_u32", v(B.XA), s(S_T0), v(B.TMP))]
    c += [valu("v_lshlrev_b32", v(B.L16), 4, v(0))]
    c += set_q_off(0)
    if role == "kv":
        c += [salu("s_cmp_eq_u32", s(S_U), 1)]
        for k in range(2):
            c += [salu("s_cselect_b32", s(S_KV + k), s(S_V + k), s(S_KV + k))]
        c += [salu("s_lshl_b32", s(S_LDSKV), s(S_U), 15), salu("s_add_u32", s(S_LDSKV), s(S_LDSKV), hex(LDS_K))]
        c += [salu("s_lshl_b32", s(S_T0), s(S_B), 5), salu("s_add_u32", s(S_T0), s(S_T0), s(S_J)),
              salu("s_lshl_b32", s(S_KVCUR), s(S_T0), 17),
              salu("s_add_u32", s(S_KVNXT), s(S_KVCUR), hex(8 << 17))]
    else:
        c += [salu("s_add_u32", s(S_HQN), s(S_HQ), 2048)]
    rb = Rebase()
    for pi in range(18):
        if role == "kv":
            if pi == 4:
                c += [wait_vm(0)]
                c += calc_tile_voff(B.VO, 0, 256, 0, B.TMP, B.TMP + 1)
                c += calc_tile_voff(B.VO + 1, 1, 256, 0, B.TMP, B.TMP + 1)
        else:
            if pi == 6:
                c += [wait_tag("init")]
        c += [wait_lgkm(0), barrier()]
        eg = []
        if role == "kv" and pi == 7:
            eg = kv_dma_groups(0, S_KVCUR, "kv0")
        rc, off = rb.reach(PRO_SLOT[pi] * WSLOT)
        c += rc + b_kstep(off, pi == 0, eg)
    rc, _ = rb.reach(0)
    if rb.base != 0:
        d = rb.base
        rc = [valu("v_subrev_u32", v(r), hex(d), v(r)) for r in list(range(B.TRA, B.TRA + 8)) + [B.XA]]
        rb.base = 0
    c += rc
    c += [wait_vm(0)]
    if role == "w":
        c += [salu("s_mov_b32", s(S_HQ), s(S_HQN)), salu("s_add_u32", s(S_HQN), s(S_HQ), 2048)]

    def one_pass(do_qp, last):
        p = []
        for idx in range(18):
            iv = (14 + idx) % 18
            ks = idx
            if role == "kv":
                if iv <= 15 and iv >= 1:
                    p += [wait_tag(f"kv{iv}")]
                elif iv == 16:
                    p += [wait_tag("kv0")]
                if iv == 17:
                    p += [wait_tag("qst")]
            else:
                if do_qp:
                    p += [wait_tag(f"n{ks}")]
                if iv == 17:
                    p += [wait_tag("qst")]
            p += [wait_lgkm(0), barrier()]
            eg = []
            if role == "kv":
                if 14 <= iv <= 16:
                    eg = kv_dma_groups(iv - 13, S_KVCUR, f"kv{iv - 13}")
                elif 1 <= iv <= 12:
                    eg = kv_dma_groups(iv + 3, S_KVCUR, f"kv{iv + 3}")
                elif iv == 13 and not last:
                    eg = kv_dma_groups(0, S_KVNXT, "kv0")
            elif do_qp:
                k2 = ks + 2
                if k2 < 18:
                    eg = w_dma_groups(B.VO, (k2 % 3) * WSLOT, S_HQ, k2 * 262144, S_XB, k2 * 64, f"n{k2}")
                else:
                    k2 -= 18
                    eg = w_dma_groups(B.VO, (k2 % 3) * WSLOT, S_HQN, k2 * 262144, S_XB, k2 * 64, f"n{k2}")
            p += b_kstep((ks % 3) * WSLOT, ks == 0, eg, finalize=(idx == 0), do_qp=do_qp)
            if role == "w" and last and iv == 14:
                p += [wait_vm(0), raw("s_endpgm", "branch")]
                return p
        return p

    adv = [salu("s_add_u32", s(S_R), s(S_R), 1)] + set_q_off(0)
    if role == "kv":
        adv += [salu("s_mov_b32", s(S_KVCUR), s(S_KVNXT)), salu("s_add_u32", s(S_KVNXT), s(S_KVCUR), hex(8 << 17))]
    else:
        adv += [salu("s_mov_b32", s(S_HQ), s(S_HQN)), salu("s_add_u32", s(S_HQN), s(S_HQ), 2048)]
    adv += [salu("s_cmp_lt_u32", s(S_R), 3), branch("s_cbranch_scc1", nm + "_loop")]

    pre, q0 = pass_vm(c)
    assert not q0
    body = one_pass(True, False)
    _, q1 = pass_vm(body, [])
    body2, q2 = pass_vm(body, q1)
    assert [t for t, _ in q1] == [t for t, _ in q2]
    fin = one_pass(False, True)
    if role == "kv":
        fin += [wait_tag("kv14"), barrier(), wait_tag("kv15"), barrier(), raw("s_endpgm", "branch")]
    fin2, _ = pass_vm(fin, q2)
    return pre + [label(nm + "_loop")] + body2 + adv + fin2


def c_prologue(which):
    c = [salu("s_add_u32", s(S_HQN), s(S_HQ), 2048)]
    if which == 0:
        c += flat(w_dma_groups(B.VO, 8 * WSLOT, S_HQ, 8 * 262144, S_XB, 8 * 64, "w8"))
    for pi in range(18):
        if pi == (3, 7)[which]:
            c += [wait_tag("init")]
        if pi >= 8 and pi % 2 == which:
            c += [wait_tag(f"w{pi}")]
        c += [barrier()]
        if pi in PRO_ISSUE and PRO_ISSUE[pi] % 2 == which:
            ks = PRO_ISSUE[pi]
            c += flat(w_dma_groups(B.VO, PRO_SLOT[ks] * WSLOT, S_HQ, ks * 262144, S_XB, ks * 64, f"w{ks}"))
        elif pi in (15, 16) and (pi - 15) == which:
            ks = pi - 15
            c += flat(w_dma_groups(B.VO, ks * WSLOT, S_HQN, ks * 262144, S_XB, ks * 64, f"n{ks}"))
    if which == 0:
        c += [wait_vm(0), barrier()]
    else:
        c += [barrier(), wait_vm(0), barrier()]
    return c


def prog_C_stub(which):
    c = [label(f"L_C{which}")] + c_prologue(which)
    c += [raw("s_endpgm", "branch")]
    return c


def kernel1():
    c = common_prologue("L_end1", 256)
    c += initial_w_load(B.VO, B.TMP, B.TMP + 1)
    c += [salu("s_cmp_lt_u32", s(S_WAVE), 3), branch("s_cbranch_scc1", "L_A"),
          salu("s_cmp_eq_u32", s(S_WAVE), 3), branch("s_cbranch_scc1", "L_C0"),
          salu("s_cmp_eq_u32", s(S_WAVE), 7), branch("s_cbranch_scc1", "L_C1"),
          salu("s_cmp_eq_u32", s(S_WAVE), 6), branch("s_cbranch_scc1", "L_Bw"),
          branch("s_branch", "L_Bkv")]
    head = pass_hazard(c)
    init_q = [("init", set())] * 17
    parts = [head]
    pa, _ = pass_vm(prog_A(), init_q)
    parts.append(pass_hazard(pass_lgkm(pa)))
    for role in ("kv", "w"):
        pb = prog_B_with_init(role, init_q)
        parts.append(pass_hazard(pass_lgkm(pb)))
    for which in range(2):
        pc, _ = pass_vm(prog_C_stub(which), init_q)
        parts.append(pass_hazard(pc))
    parts.append([label("L_end1"), raw("s_endpgm", "branch")])
    return [i for p in parts for i in p]


def prog_B_with_init(role, init_q):
    global pass_vm
    orig = pass_vm
    state = {"first": True}

    def wrapped(code, init=None):
        if state["first"]:
            state["first"] = False
            return orig(code, init_q)
        return orig(code, init)
    pass_vm = wrapped
    try:
        return prog_B(role)
    finally:
        pass_vm = orig


def kernel_text(name, code, vgpr, sgpr=102):
    t = f".text\n.globl {name}\n.p2align 8\n.type {name},@function\n{name}:\n"
    t += render(code)
    t += f""".section .rodata,"a"
.p2align 6
.amdhsa_kernel {name}
  .amdhsa_next_free_vgpr {vgpr}
  .amdhsa_next_free_sgpr {sgpr}
  .amdhsa_accum_offset {min(256, (vgpr + 3) // 4 * 4)}
  .amdhsa_group_segment_fixed_size 0
  .amdhsa_kernarg_size 104
  .amdhsa_user_sgpr_count 2
  .amdhsa_user_sgpr_kernarg_segment_ptr 1
  .amdhsa_system_sgpr_workgroup_id_x 1
.end_amdhsa_kernel
"""
    return t


def main(out):
    import stage1
    hdr = open(f"cdna_kernels/{NAME}.s.ref").read().split("; Override launch geometry")[0]
    launches = [(f"{NAME}_kernel", 256, 512, LDS_TOTAL)] + stage1.launches()
    for k, g, b, l in launches:
        hdr += f"; @launch kernel={k} grid=({g},1,1) block=({b},1,1) lds={l}\n"
    t = hdr + '.amdgcn_target "amdgcn-amd-amdhsa--gfx950"\n'
    t += kernel_text(f"{NAME}_kernel", kernel1(), 256)
    t += stage1.text()
    open(out, "w").write(t)


if __name__ == "__main__":
    main(sys.argv[1] if len(sys.argv) > 1 else f"cdna_kernels/{NAME}.s")
```

```python
from mbgen import *
import re
ks = []
EPI2 = """
  s_waitcnt vmcnt(0) lgkmcnt(0)
  s_memtime s[22:23]
  s_memrealtime s[34:35]
  s_waitcnt lgkmcnt(0)
  s_sub_u32 s24, s22, s20
  s_sub_u32 s36, s34, s32
  s_lshl_b32 s25, s2, 4
  s_add_u32 s25, s25, s3
  s_lshl_b32 s25, s25, 3
  v_mov_b32 v3, s25
  v_mov_b32 v4, s24
  v_mov_b32 v5, s36
  v_cmp_eq_u32 vcc, 0, v2
  s_and_saveexec_b64 s[26:27], vcc
  buffer_store_dwordx2 v[4:5], v3, s[16:19], 0 offen
  s_waitcnt vmcnt(0)
"""
def mk(name, flags, kb=160, nw=4):
    b = PRO
    b += "  v_lshlrev_b32 v6, 4, v2\n"
    b += f"  s_mul_i32 s50, s2, {kb*1024}\n  s_mul_i32 s51, s3, {kb*1024//nw}\n  s_add_u32 s50, s50, s51\n  s_add_u32 s50, s50, {1<<20}\n"
    b += "  s_barrier\n  s_memtime s[20:21]\n  s_memrealtime s[32:33]\n  s_waitcnt lgkmcnt(0)\n"
    b += f"  s_mov_b32 s30, {kb//nw//4}\n"
    b += f"L_{name}:\n"
    for k in range(4):
        b += f"  buffer_store_dwordx4 v[8:11], v6, s[16:19], s50 offen offset:{k*1024} {flags}\n"
    b += f"  s_add_u32 s50, s50, 4096\n"
    b += f"  s_sub_u32 s30, s30, 1\n  s_cmp_lg_u32 s30, 0\n  s_cbranch_scc1 L_{name}\n"
    b += EPI2
    ks.append((kernel(name, b, vgpr=64, accum=64), nw))
for nm, f in (("plain", ""), ("nt", "nt"), ("sc1", "sc1"), ("sc0sc1", "sc0 sc1"), ("sc1nt", "sc1 nt"), ("sc0sc1nt", "sc0 sc1 nt"), ("sc0", "sc0"), ("sc0nt", "sc0 nt")):
    mk("w_" + nm, f)
mk("empty", "", kb=16)
build("mb13", [k[0] for k in ks])
names = [(re.search(r"\.name: (\w+)", k[0][1]).group(1), k[1]) for k in ks]
open("mb13.sh", "w").write("".join(f"./run mb13.co {n} 256 {64*nw} 140000 12 300 4 {f}\n" for n, nw in names for f in (0, 3)))
```
